```python
import torch

def _softmax(x, axis=-1):
    return torch.softmax(x, dim=axis)
def _gelu(x):
    return torch.nn.functional.gelu(x, approximate="tanh")
def _silu(x):
    return torch.nn.functional.silu(x)
def _sigmoid(x):
    return torch.sigmoid(x)
def _layernorm(x, axis=-1, eps=1e-5):
    m = x.mean(dim=axis, keepdim=True)
    v = x.var(dim=axis, keepdim=True, unbiased=False)
    return (x - m) / torch.sqrt(v + eps)
def _scatter_add(tgt, idx, src, axis=0):
    return tgt.clone().index_add_(axis, idx, src)
def _segment_sum(src, seg, n):
    out = torch.zeros((n,) + src.shape[1:], dtype=src.dtype)
    return out.index_add_(0, seg, src)
def _pad(x, pw):
    flat = tuple(v for pair in reversed(pw) for v in pair)
    return torch.nn.functional.pad(x, flat)

kernel_name = 'standalone__molecular_angular_gemnet__graph'

def setup_inputs():

    _w = (lambda a: (lambda t: t.to(torch.bfloat16) if t.is_floating_point() else t)(torch.as_tensor(a)))
    N, deg, De, L = 10000, 16, 4, 3
    E = N * deg
    T = E * deg
    NR = 8
    dist = torch.rand(E).to(float)
    angle = (torch.rand(T) * torch.pi).to(float)
    centers = torch.linspace(0.0, 1.0, NR).to(float)
    ang_freq = torch.arange(1, L + 1).to(float)
    return {
        "m": _w((lambda *s: torch.randn(*s, dtype=torch.bfloat16) * 0.05)(E, De)),
        "idx_in": _w((lambda lo, hi, *s: torch.randint(lo, hi, s))(0, E, T).to(torch.int64)),
        "idx_out": _w((lambda lo, hi, *s: torch.randint(lo, hi, s))(0, E, T).to(torch.int64)),
        "dist": _w(dist),
        "angle": _w(angle),
        "centers": _w(centers),
        "ang_freq": _w(ang_freq),
        "w_rbf": _w((lambda *s: torch.randn(*s, dtype=torch.bfloat16) * 0.2)(NR, De)),
        "w_sbf": _w((lambda *s: torch.randn(*s, dtype=torch.bfloat16) * 0.2)(NR * L, De)),
        "w_down": _w((lambda *s: torch.randn(*s, dtype=torch.bfloat16) * 0.2)(De, De)),
        "w_up": _w((lambda *s: torch.randn(*s, dtype=torch.bfloat16) * 0.2)(De, De)),
    }

def reference(m, idx_in, idx_out, dist, angle, centers, ang_freq, w_rbf, w_sbf, w_down, w_up):
    E, De = m.shape[0], m.shape[1]
    NR = centers.shape[0]
    L = ang_freq.shape[0]
    rbf = torch.exp(-10.0 * (dist[:, None] - centers[None, :]) ** 2)
    cbf = torch.cos(ang_freq[None, :] * angle[:, None])
    rbf_t = rbf[idx_out]
    sbf = torch.reshape(rbf_t[:, :, None] * cbf[:, None, :], (-1, NR * L))
    x = (m[idx_in] @ w_down) * (sbf @ w_sbf)
    agg = _segment_sum(x, idx_out, E)
    return m + (agg @ w_up) * (rbf @ w_rbf)
```

```python
import sys
E=160000; T=2560000
HDR = open('standalone__molecular_angular_gemnet__graph.s.ref').read().split('; Override launch')[0]
o=[]
def A(s): o.append(s)
def kd(name, vg, sg=102):
    acc=(vg+3)//4*4
    return f""".amdhsa_kernel {name}
  .amdhsa_next_free_vgpr {vg}
  .amdhsa_next_free_sgpr {sg}
  .amdhsa_accum_offset {acc}
  .amdhsa_group_segment_fixed_size 0
  .amdhsa_kernarg_size 112
  .amdhsa_user_sgpr_count 2
  .amdhsa_user_sgpr_kernarg_segment_ptr 1
  .amdhsa_system_sgpr_workgroup_id_x 1
  .amdhsa_float_denorm_mode_32 3
.end_amdhsa_kernel
"""
def head(name):
    A(f".globl {name}\n.p2align 8\n.type {name},@function\n{name}:")
def srd(d, b, n):
    A(f"s_mov_b32 s{d}, s{b}\ns_and_b32 s{d+1}, s{b+1}, 0xffff\ns_mov_b32 s{d+2}, {n}\ns_mov_b32 s{d+3}, 0x20000")

extra = int(sys.argv[1]) if len(sys.argv)>1 else 0
A(HDR.rstrip())
A("; @launch kernel=zero_kernel grid=(1875,1,1) block=(256,1,1) lds=0")
A("; @launch kernel=scat_kernel grid=(10000,1,1) block=(256,1,1) lds=0")
A("; @launch kernel=fin_kernel grid=(625,1,1) block=(256,1,1) lds=0")
for i in range(extra):
    A("; @launch kernel=nop_kernel grid=(256,1,1) block=(256,1,1) lds=0")
A('.amdgcn_target "amdgcn-amd-amdhsa--gfx950"\n.text')

head("zero_kernel")
A("s_load_dwordx2 s[4:5], s[0:1], 104\ns_waitcnt lgkmcnt(0)")
srd(8,4,E*48)
A("""s_lshl_b32 s3, s2, 8
v_add_u32 v1, s3, v0
v_lshlrev_b32 v1, 4, v1
v_mov_b32 v4, 0
v_mov_b32 v5, 0
v_mov_b32 v6, 0
v_mov_b32 v7, 0
buffer_store_dwordx4 v[4:7], v1, s[8:11], 0 offen
s_endpgm""")

head("scat_kernel")
A(f"""s_cmp_ge_u32 s2, {T//256}
s_cbranch_scc1 scat_done
s_load_dwordx4 s[4:7], s[0:1], 0
s_load_dwordx2 s[8:9], s[0:1], 16
s_load_dwordx2 s[10:11], s[0:1], 32
s_load_dwordx2 s[12:13], s[0:1], 48
s_load_dwordx2 s[14:15], s[0:1], 104
s_waitcnt lgkmcnt(0)""")
srd(16,4,E*8)
srd(20,6,T*4)
srd(24,8,T*4)
srd(28,10,T*2)
srd(32,12,6)
srd(36,14,E*48)
A("""s_lshl_b32 s3, s2, 8
v_add_u32 v1, s3, v0
v_lshlrev_b32 v2, 2, v1
v_lshlrev_b32 v3, 1, v1
v_mov_b32 v4, 0
buffer_load_dword v10, v2, s[20:23], 0 offen
buffer_load_dword v11, v2, s[24:27], 0 offen
buffer_load_ushort v12, v3, s[28:31], 0 offen
buffer_load_ushort v13, v4, s[32:35], 0 offen
buffer_load_ushort v14, v4, s[32:35], 0 offen offset:2
buffer_load_ushort v15, v4, s[32:35], 0 offen offset:4
s_waitcnt vmcnt(5)
v_lshlrev_b32 v10, 3, v10
buffer_load_dwordx2 v[16:17], v10, s[16:19], 0 offen
s_waitcnt vmcnt(1)
v_mul_u32_u24 v11, 48, v11
v_lshlrev_b32 v12, 16, v12
v_mul_f32 v12, 0.15915494, v12
v_lshlrev_b32 v13, 16, v13
v_lshlrev_b32 v14, 16, v14
v_lshlrev_b32 v15, 16, v15
v_mul_f32 v13, v13, v12
v_mul_f32 v14, v14, v12
v_mul_f32 v15, v15, v12
v_fract_f32 v13, v13
v_fract_f32 v14, v14
v_fract_f32 v15, v15
v_cos_f32 v13, v13
v_cos_f32 v14, v14
v_cos_f32 v15, v15
s_waitcnt vmcnt(0)
v_lshlrev_b32 v20, 16, v16
v_and_b32 v21, 0xffff0000, v16
v_lshlrev_b32 v22, 16, v17
v_and_b32 v23, 0xffff0000, v17""")
for l in range(3):
    for k in range(4):
        A(f"v_mul_f32 v{24+l*4+k}, v{13+l}, v{20+k}")
for l in range(3):
    for k in range(4):
        A(f"buffer_atomic_add_f32 v{24+l*4+k}, v11, s[36:39], 0 offen offset:{(l*4+k)*4}")
A("scat_done:\ns_endpgm")

head("fin_kernel")
A(f"""s_cmp_ge_u32 s2, {E//256}
s_cbranch_scc1 fin_done
s_load_dwordx2 s[4:5], s[0:1], 0
s_load_dwordx2 s[6:7], s[0:1], 24
s_load_dwordx2 s[8:9], s[0:1], 40
s_load_dwordx4 s[12:15], s[0:1], 56
s_load_dwordx4 s[96:99], s[0:1], 72
s_load_dwordx2 s[10:11], s[0:1], 88
s_load_dwordx2 s[100:101], s[0:1], 104
s_waitcnt lgkmcnt(0)
s_load_dwordx16 s[16:31], s[14:15], 0
s_load_dwordx16 s[32:47], s[14:15], 64
s_load_dwordx16 s[48:63], s[14:15], 128
s_load_dwordx16 s[64:79], s[12:13], 0
s_load_dwordx8 s[80:87], s[96:97], 0
s_load_dwordx8 s[88:95], s[98:99], 0
s_waitcnt lgkmcnt(0)
s_load_dwordx4 s[96:99], s[8:9], 0
s_waitcnt lgkmcnt(0)
s_lshl_b32 s3, s2, 8
v_add_u32 v1, s3, v0
""")
srd(12,4,E*8)
A("v_lshlrev_b32 v2, 3, v1\nbuffer_load_dwordx2 v[10:11], v2, s[12:15], 0 offen")
srd(12,6,E*2)
A("v_lshlrev_b32 v3, 1, v1\nbuffer_load_ushort v12, v3, s[12:15], 0 offen")
srd(12,100,E*48)
A("""v_mul_u32_u24 v4, 48, v1
buffer_load_dwordx4 v[16:19], v4, s[12:15], 0 offen
buffer_load_dwordx4 v[20:23], v4, s[12:15], 0 offen offset:16
buffer_load_dwordx4 v[24:27], v4, s[12:15], 0 offen offset:32
s_waitcnt vmcnt(0)
v_mov_b32 v6, 0xffff0000
v_lshlrev_b32 v12, 16, v12""")
def w(reg, sbase, idx):
    s=sbase+idx//2
    if idx%2==0: A(f"v_lshlrev_b32 v{reg}, 16, s{s}")
    else: A(f"v_and_b32 v{reg}, s{s}, v6")
for r in range(8):
    w(5,96,r)
    A(f"v_sub_f32 v5, v12, v5\nv_mul_f32 v5, v5, v5\nv_mul_f32 v5, 0xc166d4ca, v5\nv_exp_f32 v{30+r}, v5")
for l in range(3):
    for d in range(4):
        for k in range(4):
            w(5,80,k*4+d)
            if k==0: A(f"v_mul_f32 v{40+l*4+d}, v5, v{16+l*4+k}")
            else: A(f"v_fmac_f32 v{40+l*4+d}, v5, v{16+l*4+k}")
for l in range(3):
    for d in range(4):
        for r in range(8):
            w(5,16,(r*3+l)*4+d)
            if r==0: A(f"v_mul_f32 v{52+l*4+d}, v5, v{30+r}")
            else: A(f"v_fmac_f32 v{52+l*4+d}, v5, v{30+r}")
for d in range(4):
    for r in range(8):
        w(5,64,r*4+d)
        if r==0: A(f"v_mul_f32 v{64+d}, v5, v{30+r}")
        else: A(f"v_fmac_f32 v{64+d}, v5, v{30+r}")
for d in range(4):
    A(f"v_mul_f32 v{68+d}, v{40+d}, v{52+d}\nv_fmac_f32 v{68+d}, v{44+d}, v{56+d}\nv_fmac_f32 v{68+d}, v{48+d}, v{60+d}")
for d in range(4):
    for k in range(4):
        w(5,88,k*4+d)
        if k==0: A(f"v_mul_f32 v{72+d}, v5, v{68+k}")
        else: A(f"v_fmac_f32 v{72+d}, v5, v{68+k}")
A("""v_lshlrev_b32 v76, 16, v10
v_and_b32 v77, 0xffff0000, v10
v_lshlrev_b32 v78, 16, v11
v_and_b32 v79, 0xffff0000, v11""")
for d in range(4): A(f"v_fmac_f32 v{76+d}, v{72+d}, v{64+d}")
A("v_cvt_pk_bf16_f32 v80, v76, v77\nv_cvt_pk_bf16_f32 v81, v78, v79")
srd(12,10,E*8)
A("buffer_store_dwordx2 v[80:81], v2, s[12:15], 0 offen\nfin_done:\ns_endpgm")

head("nop_kernel")
A("s_endpgm")
A('.section .rodata,"a"\n.p2align 6')
for n,v in (("zero_kernel",8),("scat_kernel",40),("fin_kernel",84)):
    A(kd(n,v)); A(".p2align 6")
if extra: A(kd("nop_kernel",8))
open(sys.argv[2] if len(sys.argv)>2 else 'base.s','w').write("\n".join(o)+"\n")
```
